```python
import torch

def _softmax(x, axis=-1):
    return torch.softmax(x, dim=axis)
def _gelu(x):
    return torch.nn.functional.gelu(x, approximate="tanh")
def _silu(x):
    return torch.nn.functional.silu(x)
def _sigmoid(x):
    return torch.sigmoid(x)
def _layernorm(x, axis=-1, eps=1e-5):
    m = x.mean(dim=axis, keepdim=True)
    v = x.var(dim=axis, keepdim=True, unbiased=False)
    return (x - m) / torch.sqrt(v + eps)
def _scatter_add(tgt, idx, src, axis=0):
    return tgt.clone().index_add_(axis, idx, src)
def _segment_sum(src, seg, n):
    out = torch.zeros((n,) + src.shape[1:], dtype=src.dtype)
    return out.index_add_(0, seg, src)
def _pad(x, pw):
    flat = tuple(v for pair in reversed(pw) for v in pair)
    return torch.nn.functional.pad(x, flat)

kernel_name = 'standalone__low_rank_proj_linformer__sampling'

def setup_inputs():

    _w = (lambda a: (lambda t: t.to(torch.bfloat16) if t.is_floating_point() else t)(torch.as_tensor(a)))
    B, H, Sq, Skv, Dh, R = 8, 32, 4, 2048, 128, 64
    return {
        "q": _w((lambda *s: torch.randn(*s, dtype=torch.bfloat16) * 0.8)(B, H, Sq, Dh)),
        "k": _w((lambda *s: torch.randn(*s, dtype=torch.bfloat16) * 0.8)(B, H, Skv, Dh)),
        "v": _w((lambda *s: torch.randn(*s, dtype=torch.bfloat16) * 0.05)(B, H, Skv, Dh)),
        "e_proj": _w((lambda *s: torch.randn(*s, dtype=torch.bfloat16) * 0.8)(R, Skv) * (Skv ** -0.5)),
        "f_proj": _w((lambda *s: torch.randn(*s, dtype=torch.bfloat16) * 0.05)(R, Skv) * (Skv ** -0.5)),
    }

def reference(q, k, v, e_proj, f_proj):
    B, H, Sq, Dh = q.shape
    kp = torch.einsum("rn,bhnd->bhrd", e_proj, k)
    vp = torch.einsum("rn,bhnd->bhrd", f_proj, v)
    scores = torch.einsum("bhqd,bhrd->bhqr", q, kp) * (Dh ** -0.5)
    p = _softmax(scores, axis=-1)
    o = torch.einsum("bhqr,bhrd->bhqd", p, vp)
    return o
```

```python
import sys, json
sys.path.insert(0, "bench")

KNAME = "standalone__low_rank_proj_linformer__sampling_kernel"

HEADER = """; Kernarg layout for this problem (64 bytes, ptrs only, base s[0:1]):
"""


def gen(NW=8, R=1, xpol="nt", epol="", stag="xcd", **kw):
    L = []
    def A(s):
        L.append("    " + s)
    def LB(s):
        L.append(s + ":")
    def C(s):
        L.append("    ; " + s)

    SPW = 64 // NW
    SLOT = 12288
    WREG = R * SLOT
    RED = NW * WREG
    LDS = RED + NW * 1024 + NW * 2048
    REDO = RED + NW * 1024
    assert LDS <= 163840

    sX, sE, sQ, sO = 8, 12, 16, 20
    sKV = 24
    sW, sWB, sStep, sXoff, sEoff, sCnt, sIt = 32, 33, 34, 35, 36, 37, 38
    sVb = 40
    sT0, sT1 = 42, 43
    sQp, sOp = 44, 46
    sSc = 48
    vL, vI, vG, vT0, vT1, vT2 = 1, 2, 3, 4, 5, 6
    vPX = 8
    vVX = 12
    vPE = 16
    vKR = 20
    vER = 24
    vFR = 25
    vRW = 26
    vRR = 27
    vVR = 28
    vQF = 36
    vXF = 52
    vEF = 84
    vDS = 100
    vBS = 108
    vSA = 112
    vPF = 128
    vOA = 136
    NV = 168

    def r4(b): return f"v[{b}:{b+3}]"
    def r2(b): return f"v[{b}:{b+1}]"

    def PF(r):
        C(f"prefetch next step into slot {r}")
        A(f"s_add_u32 m0, s{sWB}, {r*SLOT}")
        A("s_nop 0")
        for j in range(4):
            A(f"buffer_load_dwordx4 v{vPX + (j>>1)}, s[{sX}:{sX+3}], s{sXoff} offen offset:{(j&3)*1024} {xpol} lds")
        A(f"s_add_u32 m0, s{sWB}, {r*SLOT+4096}")
        A("s_nop 0")
        for j in range(4, 8):
            A(f"buffer_load_dwordx4 v{vPX + (j>>1)}, s[{sX}:{sX+3}], s{sXoff} offen offset:{(j&3)*1024} {xpol} lds")
        A(f"s_add_u32 m0, s{sWB}, {r*SLOT+8192}")
        A("s_nop 0")
        for t in range(4):
            A(f"buffer_load_dwordx4 v{vPE + t}, s[{sE}:{sE+3}], s{sEoff} offen offset:{t*1024} {epol} lds")

    uid = [0]
    def ADV(phase):
        A(f"s_add_u32 s{sStep}, s{sStep}, {NW}")
        A(f"s_and_b32 s{sStep}, s{sStep}, 63")
        A(f"s_lshl_b32 s{sXoff}, s{sStep}, 13")
        A(f"s_lshl_b32 s{sEoff}, s{sStep}, 6")
        A(f"s_add_u32 s{sCnt}, s{sCnt}, 1")
        if phase == "K":
            uid[0] += 1
            lab = f"L_nosw{uid[0]}"
            A(f"s_cmp_lg_u32 s{sCnt}, {SPW}")
            A(f"s_cbranch_scc1 {lab}")
            A(f"s_mov_b32 s{sX}, s{sVb}")
            A(f"s_mov_b32 s{sX+1}, s{sVb+1}")
            A(f"s_mov_b32 s{sE}, s{sKV+6}")
            A(f"s_mov_b32 s{sE+1}, s{sKV+7}")
            for j in range(4):
                A(f"v_mov_b32 v{vPX+j}, v{vVX+j}")
            LB(lab)
        else:
            A(f"s_cmp_ge_u32 s{sCnt}, {2*SPW}")
            A(f"s_cselect_b32 s{sX+2}, 0, s{sX+2}")
            A(f"s_cselect_b32 s{sE+2}, 0, s{sE+2}")

    A("s_cmp_ge_u32 s2, 256")
    A("s_cbranch_scc1 L_end")
    A(f"s_load_dwordx8 s[{sKV}:{sKV+7}], s[0:1], 8")
    A(f"s_load_dwordx2 s[{sQp}:{sQp+1}], s[0:1], 0")
    A(f"s_load_dwordx2 s[{sOp}:{sOp+1}], s[0:1], 40")
    A(f"v_lshrrev_b32 v{vT0}, 6, v0")
    A(f"v_and_b32 v{vL}, 63, v0")
    A(f"v_readfirstlane_b32 s{sW}, v{vT0}")
    A(f"v_and_b32 v{vI}, 15, v{vL}")
    A(f"v_lshrrev_b32 v{vG}, 4, v{vL}")
    A(f"v_xor_b32 v{vT0}, v{vI}, v{vG}")
    A(f"v_lshlrev_b32 v{vT1}, 8, v{vG}")
    A(f"v_lshl_add_u32 v{vPX}, v{vT0}, 4, v{vT1}")
    A(f"v_xor_b32 v{vPX+1}, 64, v{vPX}")
    A(f"v_xor_b32 v{vPX+2}, 0x1080, v{vPX}")
    A(f"v_xor_b32 v{vPX+3}, 0x10c0, v{vPX}")
    A(f"v_and_b32 v{vT0}, 2, v{vG}")
    A(f"v_and_b32 v{vT2}, 3, v{vL}")
    A(f"v_xor_b32 v{vT0}, v{vT0}, v{vT2}")
    A(f"v_lshrrev_b32 v{vT2}, 2, v{vL}")
    A(f"v_lshlrev_b32 v{vT2}, 12, v{vT2}")
    A(f"v_lshl_add_u32 v{vPE}, v{vT0}, 4, v{vT2}")
    for t in range(1, 4):
        A(f"v_add_u32 v{vPE+t}, {t*(65536-1024)}, v{vPE}")
    if stag == "none":
        A(f"s_mov_b32 s{sStep}, s{sW}")
    else:
        if stag == "xcd":
            A(f"s_lshr_b32 s{sT0}, s2, 3")
        elif stag == "wg":
            A(f"s_mov_b32 s{sT0}, s2")
        elif stag == "mix":
            A(f"s_lshr_b32 s{sT0}, s2, 3")
            A(f"s_add_u32 s{sT0}, s{sT0}, s2")
        sm = kw.get("stagmul", NW)
        A(f"s_mul_i32 s{sT0}, s{sT0}, {sm}")
        A(f"s_add_u32 s{sStep}, s{sT0}, s{sW}")
        A(f"s_and_b32 s{sStep}, s{sStep}, 63")
    A(f"s_lshl_b32 s{sXoff}, s{sStep}, 13")
    A(f"s_lshl_b32 s{sEoff}, s{sStep}, 6")
    A(f"s_mul_i32 s{sWB}, s{sW}, {WREG}")
    A(f"s_mov_b32 s{sCnt}, 0")
    A(f"s_lshl_b32 s{sT0}, s2, 19")
    A(f"s_lshr_b32 s{sT1}, s2, 13")
    A(f"s_mov_b32 s{sX+2}, 0x80000")
    A(f"s_mov_b32 s{sX+3}, 0x20000")
    A(f"s_mov_b32 s{sE+2}, 0x40000")
    A(f"s_mov_b32 s{sE+3}, 0x20000")
    A("s_waitcnt lgkmcnt(0)")
    A(f"s_add_u32 s{sX}, s{sKV}, s{sT0}")
    A(f"s_addc_u32 s{sX+1}, s{sKV+1}, s{sT1}")
    A(f"s_mov_b32 s{sE}, s{sKV+4}")
    A(f"s_mov_b32 s{sE+1}, s{sKV+5}")
    PF(0)
    A(f"s_add_u32 s{sVb}, s{sKV+2}, s{sT0}")
    A(f"s_addc_u32 s{sVb+1}, s{sKV+3}, s{sT1}")
    A(f"s_lshl_b32 s{sT0}, s2, 10")
    A(f"s_add_u32 s{sQ}, s{sQp}, s{sT0}")
    A(f"s_addc_u32 s{sQ+1}, s{sQp+1}, 0")
    A(f"s_mov_b32 s{sQ+2}, 1024")
    A(f"s_mov_b32 s{sQ+3}, 0x20000")
    A(f"s_add_u32 s{sO}, s{sOp}, s{sT0}")
    A(f"s_addc_u32 s{sO+1}, s{sOp+1}, 0")
    A(f"s_mov_b32 s{sO+2}, 1024")
    A(f"s_mov_b32 s{sO+3}, 0x20000")
    A(f"v_and_b32 v{vT0}, 3, v{vL}")
    A(f"v_lshlrev_b32 v{vT0}, 8, v{vT0}")
    A(f"v_lshl_add_u32 v{vT0}, v{vG}, 4, v{vT0}")
    for ks in range(4):
        A(f"buffer_load_dwordx4 {r4(vQF+4*ks)}, v{vT0}, s[{sQ}:{sQ+3}], 0 offen offset:{ks*64}")
    A(f"v_lshlrev_b32 v{vT0}, 1, v{vG}")
    A(f"v_xor_b32 v{vT0}, v{vI}, v{vT0}")
    A(f"v_lshl_add_u32 v{vVX}, v{vT0}, 4, v{vT1}")
    A(f"v_xor_b32 v{vVX+1}, 0x80, v{vVX}")
    A(f"v_xor_b32 v{vVX+2}, 0x1000, v{vVX}")
    A(f"v_xor_b32 v{vVX+3}, 0x1080, v{vVX}")
    ADV("K")
    for r in range(1, R):
        PF(r)
        ADV("K")
    A(f"v_lshrrev_b32 v{vT0}, 2, v{vI}")
    A(f"v_and_b32 v{vT2}, 3, v{vI}")
    A(f"v_lshl_add_u32 v{vT2}, v{vT0}, 3, v{vT2}")
    A(f"v_lshlrev_b32 v{vT2}, 8, v{vT2}")
    A(f"v_xor_b32 v{vT1}, v{vI}, v{vG}")
    A(f"v_lshl_add_u32 v{vT2}, v{vT1}, 4, v{vT2}")
    for ks in range(4):
        A(f"v_xor_b32 v{vKR+ks}, {ks<<6}, v{vT2}")
        A(f"v_add_u32 v{vKR+ks}, s{sWB}, v{vKR+ks}")
    A(f"v_and_b32 v{vT1}, 2, v{vT0}")
    A(f"v_xor_b32 v{vT1}, v{vT1}, v{vG}")
    A(f"v_lshlrev_b32 v{vT2}, 6, v{vI}")
    A(f"v_lshl_add_u32 v{vER}, v{vT1}, 4, v{vT2}")
    A(f"v_add_u32 v{vER}, s{sWB}, v{vER}")
    A(f"v_lshl_add_u32 v{vT1}, v{vG}, 2, v{vT0}")
    A(f"v_lshlrev_b32 v{vT1}, 6, v{vT1}")
    A(f"v_and_b32 v{vT2}, 2, v{vG}")
    A(f"v_and_b32 v{vFR}, 3, v{vI}")
    A(f"v_xor_b32 v{vT2}, v{vT2}, v{vFR}")
    A(f"v_lshl_add_u32 v{vFR}, v{vT2}, 4, v{vT1}")
    A(f"v_add_u32 v{vFR}, s{sWB}, v{vFR}")
    A(f"v_lshl_add_u32 v{vT1}, v{vG}, 3, v{vT0}")
    A(f"v_lshlrev_b32 v{vT1}, 8, v{vT1}")
    A(f"v_and_b32 v{vT2}, 1, v{vI}")
    A(f"v_lshl_add_u32 v{vT1}, v{vT2}, 3, v{vT1}")
    A(f"v_bfe_u32 v{vT2}, v{vI}, 1, 1")
    A(f"v_lshl_or_b32 v{vT2}, v{vT0}, 1, v{vT2}")
    A(f"v_and_b32 v{vVR}, 1, v{vG}")
    A(f"v_lshl_or_b32 v{vT2}, v{vVR}, 3, v{vT2}")
    A(f"v_lshl_add_u32 v{vT1}, v{vT2}, 4, v{vT1}")
    for dt in range(8):
        A(f"v_xor_b32 v{vVR+dt}, {dt<<5}, v{vT1}")
        A(f"v_add_u32 v{vVR+dt}, s{sWB}, v{vVR+dt}")
    for k in range(16):
        A(f"v_mov_b32 v{vSA+k}, 0")
    for k in range(32):
        A(f"v_mov_b32 v{vOA+k}, 0")
    A(f"s_mov_b32 s{sIt}, 0")

    LB("L_kloop")
    for r in range(R):
        so = r * SLOT
        A(f"s_waitcnt vmcnt({(R-1)*12})")
        for ks in range(4):
            for tau in range(2):
                A(f"ds_read_b128 {r4(vXF + (tau*4+ks)*4)}, v{vKR+ks} offset:{so + tau*1024}")
        for t in range(4):
            A(f"ds_read_b128 {r4(vEF + t*4)}, v{vER} offset:{so + 8192 + t*1024}")
        for ks in range(4):
            A(f"s_waitcnt lgkmcnt({4 + 6 - 2*ks})")
            for tau in range(2):
                c = "0" if ks == 0 else r4(vDS + tau*4)
                A(f"v_mfma_f32_16x16x32_bf16 {r4(vDS+tau*4)}, {r4(vXF + (tau*4+ks)*4)}, {r4(vQF+4*ks)}, {c}")
        A("s_waitcnt lgkmcnt(0)")
        PF(r)
        ADV("K")
        A(f"v_cvt_pk_bf16_f32 v{vBS}, v{vDS}, v{vDS+1}")
        A(f"v_cvt_pk_bf16_f32 v{vBS+1}, v{vDS+2}, v{vDS+3}")
        A(f"v_cvt_pk_bf16_f32 v{vBS+2}, v{vDS+4}, v{vDS+5}")
        A(f"v_cvt_pk_bf16_f32 v{vBS+3}, v{vDS+6}, v{vDS+7}")
        A("s_nop 1")
        for t in range(4):
            A(f"v_mfma_f32_16x16x32_bf16 {r4(vSA+t*4)}, {r4(vEF+t*4)}, {r4(vBS)}, {r4(vSA+t*4)}")
    A(f"s_add_u32 s{sIt}, s{sIt}, 1")
    A(f"s_cmp_lt_u32 s{sIt}, {SPW//R}")
    A("s_cbranch_scc1 L_kloop")

    C("scores partial -> LDS: lanes c<4: RED + w*1024 + (c*4+g)*64 + t*16")
    A(f"v_and_b32 v{vT0}, 3, v{vI}")
    A(f"v_lshl_add_u32 v{vT0}, v{vT0}, 2, v{vG}")
    A(f"v_lshlrev_b32 v{vT0}, 6, v{vT0}")
    A(f"s_lshl_b32 s{sT0}, s{sW}, 10")
    A(f"s_add_u32 s{sT0}, s{sT0}, {RED}")
    A(f"v_add_u32 v{vRW}, s{sT0}, v{vT0}")
    A(f"v_lshrrev_b32 v{vT1}, 2, v{vI}")
    A(f"v_lshl_add_u32 v{vRR}, v{vT1}, 10, v{vT0}")
    A(f"v_add_u32 v{vRR}, {RED}, v{vRR}")
    A("s_mov_b32 exec_lo, 0x000f000f")
    A("s_mov_b32 exec_hi, 0x000f000f")
    A("s_nop 3")
    for t in range(4):
        A(f"ds_write_b128 v{vRW}, {r4(vSA+t*4)} offset:{t*16}")
    A("s_mov_b64 exec, -1")
    A("s_waitcnt lgkmcnt(0)")
    A("s_barrier")
    nrd = NW // 4
    for u in range(nrd):
        for t in range(4):
            dst = vSA + t*4 if u == 0 else vXF + (u-1)*16 + t*4
            A(f"ds_read_b128 {r4(dst)}, v{vRR} offset:{u*4096 + t*16}")
    A("s_waitcnt lgkmcnt(0)")
    for u in range(1, nrd):
        for k in range(16):
            A(f"v_add_f32 v{vSA+k}, v{vSA+k}, v{vXF+(u-1)*16+k}")
    A("s_nop 1")
    for k in range(16):
        A(f"v_add_f32_dpp v{vSA+k}, v{vSA+k}, v{vSA+k} row_ror:4 row_mask:0xf bank_mask:0xf")
    A("s_nop 1")
    for k in range(16):
        A(f"v_add_f32_dpp v{vSA+k}, v{vSA+k}, v{vSA+k} row_ror:8 row_mask:0xf bank_mask:0xf")
    C("row max over 16 regs and the 4 lane groups")
    A(f"v_max3_f32 v{vT0}, v{vSA}, v{vSA+1}, v{vSA+2}")
    for k in range(3, 15, 2):
        A(f"v_max3_f32 v{vT0}, v{vT0}, v{vSA+k}, v{vSA+k+1}")
    A(f"v_max_f32 v{vT0}, v{vT0}, v{vSA+15}")
    A(f"v_mov_b32 v{vT1}, v{vT0}")
    A("s_nop 1")
    A(f"v_permlane32_swap_b32 v{vT0}, v{vT1}")
    A("s_nop 1")
    A(f"v_max_f32 v{vT0}, v{vT0}, v{vT1}")
    A(f"v_mov_b32 v{vT1}, v{vT0}")
    A("s_nop 1")
    A(f"v_permlane16_swap_b32 v{vT0}, v{vT1}")
    A("s_nop 1")
    A(f"v_max_f32 v{vT0}, v{vT0}, v{vT1}")
    import math, struct
    sc = (128 ** -0.5) * math.log2(math.e)
    scb = struct.unpack("<I", struct.pack("<f", sc))[0]
    A(f"s_mov_b32 s{sSc}, {scb:#x}")
    A(f"v_mul_f32 v{vT0}, s{sSc}, v{vT0}")
    for k in range(16):
        A(f"v_fma_f32 v{vSA+k}, v{vSA+k}, s{sSc}, -v{vT0}")
    for k in range(16):
        A(f"v_exp_f32 v{vSA+k}, v{vSA+k}")
    A("s_nop 0")
    A(f"v_add_f32 v{vT0}, v{vSA}, v{vSA+1}")
    for k in range(2, 16):
        A(f"v_add_f32 v{vT0}, v{vT0}, v{vSA+k}")
    A(f"v_mov_b32 v{vT1}, v{vT0}")
    A("s_nop 1")
    A(f"v_permlane32_swap_b32 v{vT0}, v{vT1}")
    A("s_nop 1")
    A(f"v_add_f32 v{vT0}, v{vT0}, v{vT1}")
    A(f"v_mov_b32 v{vT1}, v{vT0}")
    A("s_nop 1")
    A(f"v_permlane16_swap_b32 v{vT0}, v{vT1}")
    A("s_nop 1")
    A(f"v_add_f32 v{vT0}, v{vT0}, v{vT1}")
    A(f"v_rcp_f32 v{vT0}, v{vT0}")
    A("s_nop 0")
    for k in range(16):
        A(f"v_mul_f32 v{vSA+k}, v{vSA+k}, v{vT0}")
    for k in range(8):
        A(f"v_cvt_pk_bf16_f32 v{vPF+k}, v{vSA+2*k}, v{vSA+2*k+1}")
    A(f"s_mov_b32 s{sIt}, 0")

    LB("L_vloop")
    for r in range(R):
        so = r * SLOT
        A(f"s_waitcnt vmcnt({(R-1)*12})")
        for ks in range(2):
            for tau in range(2):
                for ts in range(2):
                    t = 2*ks + ts
                    A(f"ds_read_b64_tr_b16 {r2(vEF + (tau*2+ks)*4 + ts*2)}, v{vFR} offset:{so + 8192 + t*1024 + tau*8}")
        for dt in range(3):
            for h in range(2):
                A(f"ds_read_b64_tr_b16 {r2(vXF + dt*4 + h*2)}, v{vVR+dt} offset:{so + h*1024}")
        A("s_waitcnt lgkmcnt(10)")
        for tau in range(2):
            A(f"v_mfma_f32_16x16x32_bf16 {r4(vDS+tau*4)}, {r4(vEF + (tau*2+0)*4)}, {r4(vPF)}, 0")
        A("s_waitcnt lgkmcnt(6)")
        for tau in range(2):
            A(f"v_mfma_f32_16x16x32_bf16 {r4(vDS+tau*4)}, {r4(vEF + (tau*2+1)*4)}, {r4(vPF+4)}, {r4(vDS+tau*4)}")
        for dt in range(3, 8):
            for h in range(2):
                A(f"ds_read_b64_tr_b16 {r2(vXF + dt*4 + h*2)}, v{vVR+dt} offset:{so + h*1024}")
        A(f"v_cvt_pk_bf16_f32 v{vBS}, v{vDS}, v{vDS+1}")
        A(f"v_cvt_pk_bf16_f32 v{vBS+1}, v{vDS+2}, v{vDS+3}")
        A(f"v_cvt_pk_bf16_f32 v{vBS+2}, v{vDS+4}, v{vDS+5}")
        A(f"v_cvt_pk_bf16_f32 v{vBS+3}, v{vDS+6}, v{vDS+7}")
        A("s_waitcnt lgkmcnt(0)")
        PF(r)
        ADV("V")
        for dt in range(8):
            A(f"v_mfma_f32_16x16x32_bf16 {r4(vOA+dt*4)}, {r4(vXF+dt*4)}, {r4(vBS)}, {r4(vOA+dt*4)}")
    A(f"s_add_u32 s{sIt}, s{sIt}, 1")
    A(f"s_cmp_lt_u32 s{sIt}, {SPW//R}")
    A("s_cbranch_scc1 L_vloop")

    C("o partial -> LDS: lanes c<4: REDO + w*2048 + q*512 + (dt*16+g*4)*4")
    A(f"v_lshlrev_b32 v{vT0}, 9, v{vI}")
    A(f"v_lshl_add_u32 v{vT0}, v{vG}, 4, v{vT0}")
    A(f"s_lshl_b32 s{sT0}, s{sW}, 11")
    A(f"s_add_u32 s{sT0}, s{sT0}, {REDO}")
    A(f"v_add_u32 v{vRW}, s{sT0}, v{vT0}")
    A(f"v_lshlrev_b32 v{vRR}, 3, v0")
    A(f"v_add_u32 v{vRR}, {REDO}, v{vRR}")
    A(f"v_lshlrev_b32 v{vT2}, 2, v0")
    A("s_mov_b32 exec_lo, 0x000f000f")
    A("s_mov_b32 exec_hi, 0x000f000f")
    A("s_nop 3")
    for dt in range(8):
        A(f"ds_write_b128 v{vRW}, {r4(vOA+dt*4)} offset:{dt*64}")
    A("s_mov_b64 exec, -1")
    A("s_waitcnt lgkmcnt(0)")
    A("s_barrier")
    if NW > 4:
        A(f"s_cmp_ge_u32 s{sW}, 4")
        A("s_cbranch_scc1 L_end")
    for u in range(NW):
        A(f"ds_read_b64 {r2(vXF+2*u)}, v{vRR} offset:{u*2048}")
    A("s_waitcnt lgkmcnt(0)")
    for u in range(1, NW):
        A(f"v_add_f32 v{vXF}, v{vXF}, v{vXF+2*u}")
        A(f"v_add_f32 v{vXF+1}, v{vXF+1}, v{vXF+2*u+1}")
    A(f"v_cvt_pk_bf16_f32 v{vXF}, v{vXF}, v{vXF+1}")
    A(f"buffer_store_dword v{vXF}, v{vT2}, s[{sO}:{sO+3}], 0 offen")
    LB("L_end")
    body = "\n".join(L)
    asm = HEADER + f"""; @launch grid=(256,1,1) block=({NW*64},1,1) lds={LDS}
.amdgcn_target "amdgcn-amd-amdhsa--gfx950"
.text
.globl {KNAME}
.p2align 8
.type {KNAME},@function
{KNAME}:
{body}
    s_endpgm
.section .rodata,"a"
.p2align 6
.amdhsa_kernel {KNAME}
  .amdhsa_next_free_vgpr {NV}
  .amdhsa_next_free_sgpr 56
  .amdhsa_accum_offset {NV}
  .amdhsa_group_segment_fixed_size 0
  .amdhsa_kernarg_size 64
  .amdhsa_user_sgpr_count 2
  .amdhsa_user_sgpr_kernarg_segment_ptr 1
  .amdhsa_system_sgpr_workgroup_id_x 1
.end_amdhsa_kernel
"""
    return asm, NW * 64, LDS


if __name__ == "__main__":
    from common import build
    import os
    cfgs = json.loads(sys.argv[1])
    specs = []
    os.chdir("bench")
    for c in cfgs:
        name = "k_" + "_".join(f"{k}{v}".replace(" ", "") for k, v in c.items())
        asm, bx, lds = gen(**c)
        open(name + ".s", "w").write(asm)
        build(asm, name)
        specs.append(f"{name}.co {KNAME}:256:{bx}:{lds}")
    open("args.txt", "w").write(" ".join(specs))
    print(json.dumps(["bench/bench", "bench/args.txt"] + ["bench/" + s.split()[0] for s in specs]))
```
